```python
import torch

def _softmax(x, axis=-1):
    return torch.softmax(x, dim=axis)
def _gelu(x):
    return torch.nn.functional.gelu(x, approximate="tanh")
def _silu(x):
    return torch.nn.functional.silu(x)
def _sigmoid(x):
    return torch.sigmoid(x)
def _layernorm(x, axis=-1, eps=1e-5):
    m = x.mean(dim=axis, keepdim=True)
    v = x.var(dim=axis, keepdim=True, unbiased=False)
    return (x - m) / torch.sqrt(v + eps)
def _scatter_add(tgt, idx, src, axis=0):
    return tgt.clone().index_add_(axis, idx, src)
def _segment_sum(src, seg, n):
    out = torch.zeros((n,) + src.shape[1:], dtype=src.dtype)
    return out.index_add_(0, seg, src)
def _pad(x, pw):
    flat = tuple(v for pair in reversed(pw) for v in pair)
    return torch.nn.functional.pad(x, flat)

kernel_name = 'parallel_sum__compressed_kv_cla__dense_activation_gelu__decode'

def setup_inputs():

    _w = (lambda a: (lambda t: t.to(torch.bfloat16) if t.is_floating_point() else t)(torch.as_tensor(a)))
    def _A_setup():
        B, H, Sq, Sk, D, M = 2, 16, 1, 4096, 256, 448
        Dc = 4 * D
        return {
            "x": _w((lambda *s: torch.randn(*s, dtype=torch.bfloat16) * 0.05)(B, Sq, M)),
            "c_kv": _w((lambda *s: torch.randn(*s, dtype=torch.bfloat16) * 0.8)(B, Sk, Dc)),
            "w_q": _w((lambda *s: torch.randn(*s, dtype=torch.bfloat16) * 3.2)(M, H, D) * (M ** -0.5)),
            "w_uk": _w((lambda *s: torch.randn(*s, dtype=torch.bfloat16) * 3.2)(Dc, H, D) * (Dc ** -0.5)),
            "w_uv": _w((lambda *s: torch.randn(*s, dtype=torch.bfloat16) * 0.8)(Dc, H, D) * (Dc ** -0.5)),
            "w_o": _w((lambda *s: torch.randn(*s, dtype=torch.bfloat16) * 0.8)(H, D, M) * ((H * D) ** -0.5)),
        }
    _A_in = _A_setup()

    def _B_setup():
        B, S, D, F = 2, 1, 448, 1792
        return {
            "x": _w((lambda *s: torch.randn(*s, dtype=torch.bfloat16) * 0.05)(B, S, D)),
            "w1": _w((lambda *s: torch.randn(*s, dtype=torch.bfloat16) * 1.6)(D, F) * (D ** -0.5)),
            "b1": _w((lambda *s: torch.randn(*s, dtype=torch.bfloat16) * 1.6)(F) * 0.01),
            "w2": _w((lambda *s: torch.randn(*s, dtype=torch.bfloat16) * 0.2)(F, D) * (F ** -0.5)),
            "b2": _w((lambda *s: torch.randn(*s, dtype=torch.bfloat16) * 0.2)(D) * 0.01),
        }
    _B_in = _B_setup()

    return {
        "A_x": _A_in["x"],
        "A_c_kv": _A_in["c_kv"],
        "A_w_q": _A_in["w_q"],
        "A_w_uk": _A_in["w_uk"],
        "A_w_uv": _A_in["w_uv"],
        "A_w_o": _A_in["w_o"],
        "B_x": _B_in["x"],
        "B_w1": _B_in["w1"],
        "B_b1": _B_in["b1"],
        "B_w2": _B_in["w2"],
        "B_b2": _B_in["b2"],
    }

def reference(A_x, A_c_kv, A_w_q, A_w_uk, A_w_uv, A_w_o, B_x, B_w1, B_b1, B_w2, B_b2):
    def _A_ref(x, c_kv, w_q, w_uk, w_uv, w_o):
        B, Sq, M = x.shape[0], x.shape[1], x.shape[2]
        Sk = c_kv.shape[1]
        H, D = w_q.shape[1], w_q.shape[2]
        q = torch.einsum("bqm,mhd->bhqd", x, w_q)
        k = torch.einsum("bkc,chd->bhkd", c_kv, w_uk)
        v = torch.einsum("bkc,chd->bhkd", c_kv, w_uv)
        scores = torch.einsum("bhqd,bhkd->bhqk", q, k) * (D ** -0.5)
        off = Sk - Sq
        qi = torch.arange(Sq)[:, None]
        kj = torch.arange(Sk)[None, :]
        cmask = kj <= (qi + off)
        scores = torch.where(cmask[None, None], scores, -1e9)
        p = _softmax(scores, axis=-1)
        ctx = torch.einsum("bhqk,bhkd->bhqd", p, v)
        return torch.einsum("bhqd,hdm->bqm", ctx, w_o)

    def _B_ref(x, w1, b1, w2, b2):
        h = torch.einsum("bsd,df->bsf", x, w1) + b1
        h = _gelu(h)
        return torch.einsum("bsf,fd->bsd", h, w2) + b2

    x = A_x
    xn = _layernorm(x, axis=-1)
    return x + _A_ref(xn, A_c_kv, A_w_q, A_w_uk, A_w_uv, A_w_o) + _B_ref(xn, B_w1, B_b1, B_w2, B_b2)
```

```python
WS_Q, WS_H, WS_ACC, WS_QABS, WS_STAT, WS_CTXP, WS_OP = 0x0, 0x10000, 0x20000, 0x30000, 0x50000, 0x80000, 0x100000
NREP = 8
o = []
def e(s): o.append(s)

hdr = open('parallel_sum__compressed_kv_cla__dense_activation_gelu__decode.s.ref').read().split('; Override')[0]
e(hdr.rstrip())
e('; @launch kernel=k1_kernel grid=(92,1,1) block=(256,1,1) lds=20480')
e('; @launch kernel=k2_kernel grid=(256,1,1) block=(256,1,1) lds=0')
e('; @launch kernel=k3_kernel grid=(256,1,1) block=(256,1,1) lds=75264')
e('; @launch kernel=k4_kernel grid=(256,1,1) block=(256,1,1) lds=18432')
e('; @launch kernel=k5_kernel grid=(184,1,1) block=(256,1,1) lds=16384')
e('.amdgcn_target "amdgcn-amd-amdhsa--gfx950"')
e('.text')
e('''.macro DPPRED op, v, bc
  s_nop 1
  \\op \\v, \\v, \\v row_shr:1 row_mask:0xf bank_mask:0xf \\bc
  s_nop 1
  \\op \\v, \\v, \\v row_shr:2 row_mask:0xf bank_mask:0xf \\bc
  s_nop 1
  \\op \\v, \\v, \\v row_shr:4 row_mask:0xf bank_mask:0xf \\bc
  s_nop 1
  \\op \\v, \\v, \\v row_shr:8 row_mask:0xf bank_mask:0xf \\bc
  s_nop 1
  \\op \\v, \\v, \\v row_bcast:15 row_mask:0xa bank_mask:0xf
  s_nop 1
  \\op \\v, \\v, \\v row_bcast:31 row_mask:0xc bank_mask:0xf
  s_nop 1
.endm''')

def kstart(name):
    e(f'.globl {name}\n.p2align 8\n.type {name},@function\n{name}:')

kstart('k1_kernel')
e('''
  s_cmp_ge_u32 s2, 92
  s_cbranch_scc1 k1_end
  s_load_dwordx2 s[4:5], s[0:1], 0
  s_load_dwordx2 s[6:7], s[0:1], 16
  s_load_dwordx2 s[8:9], s[0:1], 56
  s_load_dwordx2 s[10:11], s[0:1], 64
  s_load_dwordx2 s[12:13], s[0:1], 104
  v_lshrrev_b32 v1, 6, v0
  v_and_b32 v2, 63, v0
  v_readfirstlane_b32 s14, v1
  s_waitcnt lgkmcnt(0)
  s_sub_u32 s20, s2, 64
  s_cmp_lt_u32 s2, 64
  s_cselect_b32 s16, s6, s8
  s_cselect_b32 s17, s7, s9
  s_movk_i32 s18, 3584
  s_cselect_b32 s18, 8192, s18
  s_cselect_b32 s19, s2, s20
  s_lshl_b32 s19, s19, 7
  v_lshrrev_b32 v3, 3, v2
  s_mul_i32 s21, s14, 112
  v_add_u32 v3, s21, v3
  v_mul_lo_u32 v4, v3, s18
  v_and_b32 v5, 7, v2
  v_lshlrev_b32 v5, 4, v5
  v_add3_u32 v4, v4, v5, s19
  s_lshl_b32 s22, s18, 3
''')
for i in range(14):
    e(f'  global_load_dwordx4 v[{16+4*i}:{19+4*i}], v4, s[16:17]')
    if i < 13: e('  v_add_u32 v4, s22, v4')
e(f'''
  s_cmp_ge_u32 s2, {NREP}
  s_cbranch_scc1 k1_nozero
  v_cmp_gt_u32 vcc, 224, v0
  s_and_saveexec_b64 s[24:25], vcc
  s_cbranch_execz k1_z2
  v_mov_b32 v8, 0
  v_mov_b32 v9, 0
  v_mov_b32 v10, 0
  v_mov_b32 v11, 0
  s_mul_i32 s23, s2, 3584
  s_add_u32 s23, s23, {WS_ACC}
  v_lshlrev_b32 v6, 4, v0
  v_add_u32 v6, s23, v6
  global_store_dwordx4 v6, v[8:11], s[12:13]
k1_z2:
  s_mov_b64 exec, s[24:25]
k1_nozero:
  s_cmp_ge_u32 s14, 2
  s_cbranch_scc1 k1_noln
  v_mov_b32 v8, 0
  v_mov_b32 v9, 0
  v_mov_b32 v10, 0
  v_mov_b32 v11, 0
  s_mul_i32 s23, s14, 896
  v_lshlrev_b32 v6, 4, v2
  v_add_u32 v6, s23, v6
  v_cmp_gt_u32 vcc, 56, v2
  s_and_saveexec_b64 s[24:25], vcc
  global_load_dwordx4 v[8:11], v6, s[4:5]
  s_mov_b64 exec, s[24:25]
  s_waitcnt vmcnt(0)
''')
for r in range(4):
    e(f'  v_lshlrev_b32 v{80+2*r}, 16, v{8+r}')
    e(f'  v_and_b32 v{81+2*r}, 0xffff0000, v{8+r}')
e('  v_add_f32 v12, v80, v81')
for r in range(2, 8): e(f'  v_add_f32 v12, v12, v{80+r}')
e('''  DPPRED v_add_f32_dpp, v12, bound_ctrl:0
  v_readlane_b32 s26, v12, 63
  s_nop 1
  v_mov_b32 v13, 0x3b124925
  v_mul_f32 v13, s26, v13
  v_mov_b32 v12, 0
''')
for r in range(8):
    e(f'  v_sub_f32 v14, v{80+r}, v13')
    e(f'  v_fmac_f32 v12, v14, v14')
e('''  v_cndmask_b32 v12, 0, v12, vcc
  DPPRED v_add_f32_dpp, v12, bound_ctrl:0
  v_readlane_b32 s27, v12, 63
  s_nop 1
  v_mov_b32 v14, 0x3b124925
  v_mul_f32 v14, s27, v14
  v_cvt_pk_bf16_f32 v13, v13, v14
  v_and_b32 v14, 0xffff0000, v13   ; var
  v_lshlrev_b32 v13, 16, v13       ; mean
  v_add_f32 v14, 0x3727c5ac, v14   ; +1e-5
  v_cvt_pk_bf16_f32 v14, v14, v14
  v_lshlrev_b32 v14, 16, v14
  v_sqrt_f32 v14, v14
  s_nop 0
  v_cvt_pk_bf16_f32 v14, v14, v14
  v_lshlrev_b32 v14, 16, v14       ; den
  v_rcp_f32 v15, v14
  s_nop 0
''')
for r in range(8):
    e(f'  v_sub_f32 v{80+r}, v{80+r}, v13')
    e(f'  v_cvt_pk_bf16_f32 v{80+r}, v{80+r}, v{80+r}')
    e(f'  v_lshlrev_b32 v{80+r}, 16, v{80+r}')
    e(f'  v_mul_f32 v7, v{80+r}, v15')
    e(f'  v_fma_f32 v6, -v7, v14, v{80+r}')
    e(f'  v_fma_f32 v7, v6, v15, v7')
    e(f'  v_cvt_pk_bf16_f32 v7, v7, v7')
    e(f'  v_lshlrev_b32 v{80+r}, 16, v7')
e('''  v_lshlrev_b32 v6, 6, v2
  s_lshl_b32 s23, s14, 2
  v_add_u32 v6, s23, v6            ; (lane*8*2 + b)*4
  s_and_saveexec_b64 s[24:25], vcc
''')
for r in range(8): e(f'  ds_write_b32 v6, v{80+r} offset:{8*r}')
e('''  s_mov_b64 exec, s[24:25]
k1_noln:
  s_waitcnt lgkmcnt(0)
  s_barrier
  v_lshlrev_b32 v6, 3, v3          ; m0*8
''')
for i in range(14): e(f'  ds_read_b64 v[{80+2*i}:{81+2*i}], v6 offset:{64*i}')
for c in range(16): e(f'  v_mov_b32 v{112+c}, 0')
e('  s_waitcnt vmcnt(0) lgkmcnt(0)')
for i in range(14):
    for r in range(4):
        w = 16 + 4*i + r
        e(f'  v_lshlrev_b32 v8, 16, v{w}')
        e(f'  v_and_b32 v9, 0xffff0000, v{w}')
        e(f'  v_fmac_f32 v{112+2*r}, v{80+2*i}, v8')
        e(f'  v_fmac_f32 v{113+2*r}, v{80+2*i}, v9')
        e(f'  v_fmac_f32 v{120+2*r}, v{81+2*i}, v8')
        e(f'  v_fmac_f32 v{121+2*r}, v{81+2*i}, v9')
e('''  v_lshrrev_b32 v6, 3, v0          ; w*8+rsub
  v_lshlrev_b32 v6, 9, v6
  v_and_b32 v7, 7, v0
  v_lshlrev_b32 v7, 5, v7
  v_add_u32 v6, v6, v7
  ds_write_b128 v6, v[112:115] offset:4096
  ds_write_b128 v6, v[116:119] offset:4112
  ds_write_b128 v6, v[120:123] offset:4352
  ds_write_b128 v6, v[124:127] offset:4368
  s_waitcnt lgkmcnt(0)
  s_barrier
  v_cmp_gt_u32 vcc, 128, v0
  s_and_saveexec_b64 s[24:25], vcc
  s_cbranch_execz k1_end
  v_lshrrev_b32 v6, 6, v0          ; b
  v_and_b32 v7, 63, v0             ; col
  v_lshlrev_b32 v8, 8, v6
  v_lshl_add_u32 v8, v7, 2, v8
''')
for i in range(32): e(f'  ds_read_b32 v{16+i}, v8 offset:{4096+512*i}')
e('  s_waitcnt lgkmcnt(0)')
for i in range(1, 32): e(f'  v_add_f32 v16, v16, v{16+i}')
e(f'''  v_cvt_pk_bf16_f32 v16, v16, v16
  s_cmp_lt_u32 s2, 64
  s_cbranch_scc0 k1_mlp
  s_lshl_b32 s23, s2, 7
  v_lshlrev_b32 v8, 13, v6
  v_lshl_add_u32 v8, v7, 1, v8
  v_add_u32 v8, s23, v8
  global_store_short v8, v16, s[12:13]
  s_branch k1_end
k1_mlp:
  s_lshl_b32 s23, s20, 7           ; f0*2
  v_lshl_add_u32 v8, v7, 1, s23
  global_load_ushort v17, v8, s[10:11]
  v_lshlrev_b32 v16, 16, v16
  s_waitcnt vmcnt(0)
  v_lshlrev_b32 v17, 16, v17
  v_add_f32 v16, v16, v17
  v_cvt_pk_bf16_f32 v16, v16, v16
  v_lshlrev_b32 v16, 16, v16
  v_mul_f32 v17, v16, v16
  v_mov_b32 v18, 0x3d372713
  v_fma_f32 v17, v17, v18, 1.0     ; 1+0.044715x^2
  v_mul_f32 v17, v17, v16
  v_mul_f32 v17, 0x40135761, v17   ; 2*sqrt(2/pi)*log2e
  v_exp_f32 v17, v17
  s_nop 0
  v_add_f32 v17, 1.0, v17
  v_rcp_f32 v17, v17
  s_nop 0
  v_fma_f32 v16, -v16, v17, v16    ; x - x/(1+e)
  v_cvt_pk_bf16_f32 v16, v16, v16
  v_lshlrev_b32 v16, 16, v16
  s_lshl_b32 s23, s20, 8           ; f0*4
  s_add_u32 s23, s23, {WS_H}
  v_mul_u32_u24 v8, 7168, v6
  v_lshl_add_u32 v8, v7, 2, v8
  v_add_u32 v8, s23, v8
  global_store_dword v8, v16, s[12:13]
k1_end:
  s_endpgm
''')

kstart('k2_kernel')
e(f'''
  s_cmp_ge_u32 s2, 256
  s_cbranch_scc1 k2_end
  s_load_dwordx2 s[4:5], s[0:1], 24
  s_load_dwordx2 s[12:13], s[0:1], 104
  s_lshr_b32 s14, s2, 4            ; h
  s_and_b32 s15, s2, 15            ; j
  v_lshrrev_b32 v1, 6, v0          ; wave
  v_and_b32 v2, 15, v0             ; l&15
  v_bfe_u32 v3, v0, 4, 2           ; (l>>4)&3
  s_lshl_b32 s16, s15, 6           ; 64j
  v_lshl_add_u32 v4, v1, 4, v2     ; 16w + (l&15)
  v_add_u32 v4, s16, v4            ; c
  v_lshlrev_b32 v5, 13, v4
  s_lshl_b32 s17, s14, 9           ; h*512
  v_lshl_add_u32 v5, v3, 4, v5
  v_add_u32 v5, s17, v5
  v_and_b32 v6, 1, v0
  v_lshlrev_b32 v6, 13, v6         ; (l&1)*8192
  v_lshl_add_u32 v6, v3, 4, v6
  v_add_u32 v6, s17, v6
  s_waitcnt lgkmcnt(0)
''')
for s in range(8):
    e(f'  global_load_dwordx4 v[{16+4*s}:{19+4*s}], v5, s[4:5] offset:{64*s}')
    e(f'  global_load_dwordx4 v[{48+4*s}:{51+4*s}], v6, s[12:13] offset:{64*s}')
for s in range(8):
    e(f'  s_waitcnt vmcnt({14-2*s})')
    src = '0' if s == 0 else 'v[80:83]'
    e(f'  v_mfma_f32_16x16x32_bf16 v[80:83], v[{16+4*s}:{19+4*s}], v[{48+4*s}:{51+4*s}], {src}')
e(f'''  s_nop 7
  s_nop 3
  v_mov_b32 v7, 0x3db8aa3b          ; log2e/16
  v_mul_f32 v80, v80, v7
  v_mul_f32 v81, v81, v7
  v_mul_f32 v82, v82, v7
  v_mul_f32 v83, v83, v7
  v_cvt_pk_bf16_f32 v80, v80, v81
  v_cvt_pk_bf16_f32 v81, v82, v83
  v_lshlrev_b32 v8, 15, v2
  v_lshl_add_u32 v8, v1, 5, v8
  v_lshl_add_u32 v8, v3, 3, v8
  s_lshl_b32 s18, s14, 11
  s_lshl_b32 s19, s15, 7
  s_add_u32 s18, s18, s19
  s_add_u32 s18, s18, {WS_QABS}
  v_add_u32 v8, s18, v8
  v_cmp_gt_u32 vcc, 2, v2
  s_and_saveexec_b64 s[24:25], vcc
  global_store_dwordx2 v8, v[80:81], s[12:13]
k2_end:
  s_endpgm
''')

RS = 2064
SBASE = 0
CBASE = 9216
SH = 144
SW = 16 * SH
kstart('k3_kernel')
e(f'''
  s_cmp_ge_u32 s2, 256
  s_cbranch_scc1 k3_end
  s_load_dwordx2 s[4:5], s[0:1], 8
  s_load_dwordx2 s[12:13], s[0:1], 104
  s_lshr_b32 s14, s2, 7            ; b
  s_and_b32 s15, s2, 127           ; chunk
  v_lshrrev_b32 v1, 6, v0          ; wave
  v_and_b32 v2, 15, v0             ; l&15
  v_bfe_u32 v3, v0, 4, 2           ; g
  s_lshl_b32 s16, s14, 23
  s_lshl_b32 s17, s15, 16
  s_add_u32 s16, s16, s17
  v_lshlrev_b32 v4, 11, v2
  v_lshl_add_u32 v4, v1, 9, v4
  v_lshl_add_u32 v4, v3, 4, v4     ; key*2048 + w*512 + g*16
  v_add_u32 v5, s16, v4
  s_lshl_b32 s17, s14, 15
  s_add_u32 s17, s17, {WS_QABS}
  v_add_u32 v6, s17, v4
  s_waitcnt lgkmcnt(0)
''')
for s in range(8):
    e(f'  global_load_dwordx4 v[{16+4*s}:{19+4*s}], v5, s[4:5] offset:{64*s}')
    e(f'  global_load_dwordx4 v[{80+4*s}:{83+4*s}], v6, s[12:13] offset:{64*s}')
e('  v_add_u32 v5, 0x8000, v5')
for s in range(8):
    e(f'  global_load_dwordx4 v[{48+4*s}:{51+4*s}], v5, s[4:5] offset:{64*s}')
e(f'''  v_mul_u32_u24 v7, {RS}, v2
  v_lshl_add_u32 v7, v1, 9, v7
  v_lshl_add_u32 v7, v3, 4, v7
  v_add_u32 v7, {CBASE}, v7
''')
for s in range(8):
    e(f'  s_waitcnt vmcnt({22-2*s})')
    src = '0' if s == 0 else 'v[112:115]'
    e(f'  v_mfma_f32_16x16x32_bf16 v[112:115], v[{16+4*s}:{19+4*s}], v[{80+4*s}:{83+4*s}], {src}')
    e(f'  ds_write_b128 v7, v[{16+4*s}:{19+4*s}] offset:{64*s}')
for s in range(8):
    e(f'  s_waitcnt vmcnt({7-s})')
    src = '0' if s == 0 else 'v[116:119]'
    e(f'  v_mfma_f32_16x16x32_bf16 v[116:119], v[{48+4*s}:{51+4*s}], v[{80+4*s}:{83+4*s}], {src}')
    e(f'  ds_write_b128 v7, v[{48+4*s}:{51+4*s}] offset:{16*RS+64*s}')
e(f'''  v_mul_u32_u24 v8, {SH}, v2
  v_mul_u32_u24 v9, {SW}, v1
  v_add_u32 v8, v8, v9
  v_lshl_add_u32 v8, v3, 4, v8
  s_nop 7
  ds_write_b128 v8, v[112:115] offset:{SBASE}
  ds_write_b128 v8, v[116:119] offset:{SBASE+64}
  s_waitcnt lgkmcnt(0)
  s_barrier
  v_mul_u32_u24 v8, {SH}, v2
  v_lshl_add_u32 v8, v3, 5, v8     ; h*SH + g*32
''')
for w in range(4):
    e(f'  ds_read_b128 v[{16+8*w}:{19+8*w}], v8 offset:{SBASE+w*SW}')
    e(f'  ds_read_b128 v[{20+8*w}:{23+8*w}], v8 offset:{SBASE+w*SW+16}')
e(f'''  v_xor_b32 v10, 16, v0
  v_and_b32 v10, 63, v10
  v_lshlrev_b32 v10, 2, v10
  v_xor_b32 v11, 32, v0
  v_and_b32 v11, 63, v11
  v_lshlrev_b32 v11, 2, v11
  s_waitcnt lgkmcnt(0)
''')
for k in range(8):
    e(f'  v_add_f32 v{16+k}, v{16+k}, v{24+k}')
    e(f'  v_add_f32 v{32+k}, v{32+k}, v{40+k}')
    e(f'  v_add_f32 v{16+k}, v{16+k}, v{32+k}')
e('''  v_max_f32 v12, v16, v17
  v_max3_f32 v12, v12, v18, v19
  v_max3_f32 v12, v12, v20, v21
  v_max3_f32 v12, v12, v22, v23
  ds_bpermute_b32 v13, v10, v12
  s_waitcnt lgkmcnt(0)
  v_max_f32 v12, v12, v13
  ds_bpermute_b32 v13, v11, v12
  s_waitcnt lgkmcnt(0)
  v_max_f32 v12, v12, v13          ; m
''')
for k in range(8):
    e(f'  v_sub_f32 v{16+k}, v{16+k}, v12')
    e(f'  v_exp_f32 v{16+k}, v{16+k}')
e('  s_nop 0')
e('  v_add_f32 v13, v16, v17')
for k in range(2, 8): e(f'  v_add_f32 v13, v13, v{16+k}')
e('''  ds_bpermute_b32 v14, v10, v13
  v_cvt_pk_bf16_f32 v24, v16, v17
  v_cvt_pk_bf16_f32 v25, v18, v19
  v_cvt_pk_bf16_f32 v26, v20, v21
  v_cvt_pk_bf16_f32 v27, v22, v23
  s_waitcnt lgkmcnt(0)
  v_add_f32 v13, v13, v14
  ds_bpermute_b32 v14, v11, v13
  s_waitcnt lgkmcnt(0)
  v_add_f32 v13, v13, v14          ; l
''')
e(f'''  v_bfe_u32 v14, v0, 2, 2          ; r
  v_lshl_add_u32 v14, v3, 3, v14   ; 8g + r
  v_mul_u32_u24 v14, {RS}, v14
  v_and_b32 v15, 3, v0             ; q
  v_lshl_add_u32 v14, v15, 5, v14  ; + 16q*2
  v_lshl_add_u32 v14, v1, 9, v14   ; + 256w*2
  v_add_u32 v14, {CBASE}, v14
''')
for tg in range(4):
    for t in range(4):
        base = 32 + 4 * t
        off = tg * 128 + t * 8
        e(f'  ds_read_b64_tr_b16 v[{base}:{base+1}], v14 offset:{off}')
        e(f'  ds_read_b64_tr_b16 v[{base+2}:{base+3}], v14 offset:{off+4*RS}')
    for t in range(4):
        e(f'  s_waitcnt lgkmcnt({6-2*t})')
        e(f'  v_mfma_f32_16x16x32_bf16 v[{48+4*t}:{51+4*t}], v[{32+4*t}:{35+4*t}], v[24:27], 0')
    e('  s_nop 7')
    e('  s_nop 3')
    for t in range(4):
        e(f'  v_cvt_pk_bf16_f32 v{64+2*t}, v{48+4*t}, v{49+4*t}')
        e(f'  v_cvt_pk_bf16_f32 v{65+2*t}, v{50+4*t}, v{51+4*t}')
    if tg == 0:
        e(f'''  s_lshl_b32 s18, s2, 15
  s_add_u32 s18, s18, {WS_OP}
  v_lshlrev_b32 v9, 11, v2
  v_lshl_add_u32 v9, v1, 9, v9
  v_lshl_add_u32 v9, v3, 5, v9
  v_add_u32 v9, s18, v9''')
    e(f'  global_store_dwordx4 v9, v[64:67], s[12:13] offset:{tg*128}')
    e(f'  global_store_dwordx4 v9, v[68:71], s[12:13] offset:{tg*128+16}')
    e('  s_nop 1')
e(f'''  v_cmp_gt_u32 vcc, 16, v0
  s_and_saveexec_b64 s[24:25], vcc
  s_cbranch_execz k3_end
  s_lshl_b32 s18, s2, 7
  s_add_u32 s18, s18, {WS_STAT}
  v_lshl_add_u32 v9, v0, 3, s18
  global_store_dwordx2 v9, v[12:13], s[12:13]
k3_end:
  s_endpgm
''')

kstart('k4_kernel')
e(f'''
  s_cmp_ge_u32 s2, 256
  s_cbranch_scc1 k4_end
  s_load_dwordx2 s[4:5], s[0:1], 32
  s_load_dwordx2 s[12:13], s[0:1], 104
  s_lshr_b32 s14, s2, 4            ; h
  s_and_b32 s15, s2, 15            ; j
  v_lshrrev_b32 v1, 6, v0          ; wave
  v_and_b32 v2, 63, v0             ; lane
  s_lshl_b32 s16, s14, 3
  s_add_u32 s16, s16, {WS_STAT}
  v_lshlrev_b32 v3, 7, v0
  v_add_u32 v3, s16, v3
  v_lshrrev_b32 v4, 3, v0
  v_lshrrev_b32 v5, 3, v2
  v_lshl_add_u32 v5, v1, 6, v5     ; row0
  v_lshlrev_b32 v5, 15, v5
  v_and_b32 v6, 7, v0
  v_lshl_add_u32 v5, v6, 4, v5
  s_lshl_b32 s17, s14, 11
  s_lshl_b32 s18, s15, 7
  s_add_u32 s17, s17, s18
  s_add_u32 s17, s17, {WS_OP}
  v_add_u32 v5, s17, v5
  v_lshrrev_b32 v6, 5, v2
  v_lshl_add_u32 v6, v1, 4, v6
  s_lshl_b32 s18, s15, 6
  v_add_u32 v6, s18, v6
  v_lshlrev_b32 v6, 13, v6
  v_and_b32 v7, 31, v0
  v_lshl_add_u32 v6, v7, 4, v6
  s_lshl_b32 s18, s14, 9
  v_add_u32 v6, s18, v6
  s_waitcnt lgkmcnt(0)
  global_load_dwordx2 v[8:9], v3, s[12:13]
''')
for i in range(8):
    e(f'  global_load_dwordx4 v[{16+4*i}:{19+4*i}], v5, s[12:13]')
    e('  v_add_u32 v5, 0x40000, v5')
for i in range(8):
    e(f'  global_load_dwordx4 v[{48+4*i}:{51+4*i}], v6, s[4:5]')
    e('  v_add_u32 v6, 0x4000, v6')
e('''  s_waitcnt vmcnt(16)
  v_mov_b32 v10, v8
  DPPRED v_max_f32_dpp, v10,
  v_readlane_b32 s20, v10, 63
  v_lshlrev_b32 v11, 2, v1
  v_mov_b32 v12, s20
  ds_write_b32 v11, v12            ; lds[w*4]
  s_waitcnt lgkmcnt(0)
  s_barrier
  v_and_b32 v11, 2, v1
  v_lshlrev_b32 v11, 2, v11        ; (b*2)*4
  ds_read_b64 v[12:13], v11
  s_waitcnt lgkmcnt(0)
  v_max_f32 v12, v12, v13          ; M_b
  v_sub_f32 v10, v8, v12
  v_exp_f32 v10, v10               ; w_s
  s_nop 0
  v_mul_f32 v13, v10, v9           ; w*l
  DPPRED v_add_f32_dpp, v13, bound_ctrl:0
  v_readlane_b32 s20, v13, 63
  v_lshlrev_b32 v11, 2, v1
  v_mov_b32 v13, s20
  ds_write_b32 v11, v13 offset:16
  s_waitcnt lgkmcnt(0)
  s_barrier
  v_and_b32 v11, 2, v1
  v_lshlrev_b32 v11, 2, v11
  ds_read_b64 v[12:13], v11 offset:16
  s_waitcnt lgkmcnt(0)
  v_add_f32 v12, v12, v13          ; L_b
  v_rcp_f32 v12, v12
  s_nop 0
  v_mul_f32 v10, v10, v12          ; f = w/L
  v_lshlrev_b32 v11, 2, v0
  ds_write_b32 v11, v10 offset:64  ; f[t]
  s_waitcnt lgkmcnt(0)
  s_barrier
  v_lshrrev_b32 v11, 3, v2
  v_lshl_add_u32 v11, v1, 6, v11
  v_lshlrev_b32 v11, 2, v11
''')
for i in range(8): e(f'  ds_read_b32 v{80+i}, v11 offset:{64+32*i}')
for c in range(8): e(f'  v_mov_b32 v{88+c}, 0')
e('  s_waitcnt vmcnt(8) lgkmcnt(0)')
for i in range(8):
    for r in range(4):
        w = 16 + 4*i + r
        e(f'  v_lshlrev_b32 v12, 16, v{w}')
        e(f'  v_and_b32 v13, 0xffff0000, v{w}')
        e(f'  v_fmac_f32 v{88+2*r}, v{80+i}, v12')
        e(f'  v_fmac_f32 v{89+2*r}, v{80+i}, v13')
e('''  v_lshrrev_b32 v11, 3, v0
  v_lshlrev_b32 v11, 8, v11
  v_and_b32 v12, 7, v0
  v_lshl_add_u32 v11, v12, 5, v11
  ds_write_b128 v11, v[88:91] offset:2048
  ds_write_b128 v11, v[92:95] offset:2064
  s_waitcnt lgkmcnt(0)
  s_barrier
  v_lshrrev_b32 v11, 6, v0         ; b for t<128
  v_lshlrev_b32 v11, 12, v11       ; b*16*256
  v_lshl_add_u32 v11, v2, 2, v11
''')
for i in range(16): e(f'  ds_read_b32 v{16+i}, v11 offset:{2048+256*i}')
e('  s_waitcnt lgkmcnt(0)')
for i in range(1, 16): e(f'  v_add_f32 v16, v16, v{16+i}')
e('''  v_lshlrev_b32 v11, 2, v0
  v_cmp_gt_u32 vcc, 128, v0
  s_and_saveexec_b64 s[24:25], vcc
  ds_write_b32 v11, v16 offset:1280 ; lat[b][64]
  s_mov_b64 exec, s[24:25]
  s_waitcnt lgkmcnt(0)
  s_barrier
  v_lshrrev_b32 v11, 5, v2
  v_lshl_add_u32 v11, v1, 4, v11
  v_lshlrev_b32 v11, 2, v11
''')
for i in range(8):
    e(f'  ds_read_b32 v{80+i}, v11 offset:{1280+8*i}')
    e(f'  ds_read_b32 v{96+i}, v11 offset:{1280+256+8*i}')
for c in range(16): e(f'  v_mov_b32 v{112+c}, 0')
e('  s_waitcnt vmcnt(0) lgkmcnt(0)')
for i in range(8):
    for r in range(4):
        w = 48 + 4*i + r
        e(f'  v_lshlrev_b32 v12, 16, v{w}')
        e(f'  v_and_b32 v13, 0xffff0000, v{w}')
        e(f'  v_fmac_f32 v{112+2*r}, v{80+i}, v12')
        e(f'  v_fmac_f32 v{113+2*r}, v{80+i}, v13')
        e(f'  v_fmac_f32 v{120+2*r}, v{96+i}, v12')
        e(f'  v_fmac_f32 v{121+2*r}, v{96+i}, v13')
e('''  v_lshrrev_b32 v11, 5, v0
  v_lshlrev_b32 v11, 11, v11
  v_and_b32 v12, 31, v0
  v_lshl_add_u32 v11, v12, 5, v11
  ds_write_b128 v11, v[112:115] offset:2048
  ds_write_b128 v11, v[116:119] offset:2064
  ds_write_b128 v11, v[120:123] offset:3072
  ds_write_b128 v11, v[124:127] offset:3088
  s_waitcnt lgkmcnt(0)
  s_barrier
  v_lshlrev_b32 v11, 3, v0
''')
for i in range(8): e(f'  ds_read_b64 v[{16+2*i}:{17+2*i}], v11 offset:{2048+2048*i}')
e('  s_waitcnt lgkmcnt(0)')
for i in range(1, 8):
    e(f'  v_add_f32 v16, v16, v{16+2*i}')
    e(f'  v_add_f32 v17, v17, v{17+2*i}')
e(f'''  ; addr = WS_CTXP + ((j*2+b)*4096 + h*256 + d)*4
  v_lshrrev_b32 v11, 7, v0
  v_lshlrev_b32 v11, 14, v11
  v_and_b32 v12, 127, v0
  v_lshl_add_u32 v11, v12, 3, v11
  s_lshl_b32 s18, s15, 15
  s_lshl_b32 s19, s14, 10
  s_add_u32 s18, s18, s19
  s_add_u32 s18, s18, {WS_CTXP}
  v_add_u32 v11, s18, v11
  global_store_dwordx2 v11, v[16:17], s[12:13]
k4_end:
  s_endpgm
''')

kstart('k5_kernel')
e(f'''
  s_cmp_ge_u32 s2, 184
  s_cbranch_scc1 k5_end
  s_load_dwordx2 s[4:5], s[0:1], 40
  s_load_dwordx2 s[6:7], s[0:1], 72
  s_load_dwordx2 s[12:13], s[0:1], 104
  s_load_dwordx2 s[8:9], s[0:1], 0
  s_load_dwordx2 s[10:11], s[0:1], 80
  s_load_dwordx2 s[26:27], s[0:1], 88
  s_load_dwordx2 s[28:29], s[0:1], 96
  v_lshrrev_b32 v1, 6, v0
  v_and_b32 v2, 63, v0
  s_sub_u32 s20, s2, 128
  s_waitcnt lgkmcnt(0)
  s_cmp_lt_u32 s2, 128
  s_cselect_b32 s16, s4, s6
  s_cselect_b32 s17, s5, s7
  s_cselect_b32 s18, s2, s20
  s_mul_i32 s18, s18, 28672        ; 32 rows*896
  v_mul_u32_u24 v3, 7168, v1
  v_lshl_add_u32 v3, v2, 4, v3
  v_add_u32 v3, s18, v3
  v_cmp_gt_u32 vcc, 56, v2
  s_and_saveexec_b64 s[24:25], vcc
''')
for i in range(8):
    e(f'  global_load_dwordx4 v[{16+4*i}:{19+4*i}], v3, s[16:17] offset:{896*(i%4)}')
    if i == 3: e('  v_add_u32 v3, 3584, v3')
e('''  s_mov_b64 exec, s[24:25]
  s_cmp_lt_u32 s2, 128
  s_cbranch_scc0 k5_mlpvec
  ; ctx: pair = lane (b = lane>>5, r = lane&31), wave sums j = 4w..4w+3
  v_lshrrev_b32 v4, 5, v2
  v_lshlrev_b32 v4, 14, v4
  v_and_b32 v5, 31, v2
  v_lshl_add_u32 v4, v5, 2, v4
  v_lshl_add_u32 v4, v1, 17, v4
  s_lshl_b32 s19, s2, 7
''' + f'''  s_add_u32 s19, s19, {WS_CTXP}
  v_add_u32 v4, s19, v4
  global_load_dword v8, v4, s[12:13]
  v_add_u32 v4, 0x8000, v4
  global_load_dword v9, v4, s[12:13]
  v_add_u32 v4, 0x8000, v4
  global_load_dword v10, v4, s[12:13]
  v_add_u32 v4, 0x8000, v4
  global_load_dword v11, v4, s[12:13]
  s_waitcnt vmcnt(0)
  v_add_f32 v8, v8, v9
  v_add_f32 v10, v10, v11
  v_add_f32 v8, v8, v10
  v_lshlrev_b32 v5, 2, v0
  ds_write_b32 v5, v8
  s_waitcnt lgkmcnt(0)
  s_barrier
  v_lshlrev_b32 v5, 2, v2
  ds_read_b32 v8, v5
  ds_read_b32 v9, v5 offset:256
  ds_read_b32 v10, v5 offset:512
  ds_read_b32 v11, v5 offset:768
  s_waitcnt lgkmcnt(0)
  v_add_f32 v8, v8, v9
  v_add_f32 v10, v10, v11
  v_add_f32 v8, v8, v10
  v_cvt_pk_bf16_f32 v8, v8, v8
  v_lshlrev_b32 v8, 16, v8
  s_branch k5_vec
k5_mlpvec:
  v_lshrrev_b32 v4, 5, v2
  v_mul_u32_u24 v4, 7168, v4
  v_and_b32 v5, 31, v2
  v_lshl_add_u32 v4, v5, 2, v4
  s_lshl_b32 s19, s20, 7
  s_add_u32 s19, s19, {WS_H}
  v_add_u32 v4, s19, v4
  global_load_dword v8, v4, s[12:13]
  s_waitcnt vmcnt(0)
k5_vec:
  ; v8 = vec[b = lane>>5][r = lane&31] in every wave; broadcast via readlane
''')
for c in range(16): e(f'  v_mov_b32 v{112+c}, 0')
e('  s_waitcnt vmcnt(0)')
e('  v_readfirstlane_b32 s21, v1')
e('  s_lshl_b32 s21, s21, 3')
for i in range(8):
    e(f'  s_add_u32 s22, s21, {i}')
    e(f'  s_add_u32 s23, s21, {32+i}')
    e(f'  v_readlane_b32 s30, v8, s22')
    e(f'  v_readlane_b32 s31, v8, s23')
    e('  s_nop 1')
    for r in range(4):
        w = 16 + 4*i + r
        e(f'  v_lshlrev_b32 v12, 16, v{w}')
        e(f'  v_and_b32 v13, 0xffff0000, v{w}')
        e(f'  v_fmac_f32 v{112+2*r}, s30, v12')
        e(f'  v_fmac_f32 v{113+2*r}, s30, v13')
        e(f'  v_fmac_f32 v{120+2*r}, s31, v12')
        e(f'  v_fmac_f32 v{121+2*r}, s31, v13')
e(f'''  s_barrier
  v_mul_u32_u24 v4, 3584, v1
  v_lshl_add_u32 v4, v2, 5, v4
  s_and_saveexec_b64 s[24:25], vcc
  ds_write_b128 v4, v[112:115]
  ds_write_b128 v4, v[116:119] offset:16
  ds_write_b128 v4, v[120:123] offset:1792
  ds_write_b128 v4, v[124:127] offset:1808
  s_mov_b64 exec, s[24:25]
  s_waitcnt lgkmcnt(0)
  s_barrier
  v_lshlrev_b32 v4, 4, v0
  v_cmp_gt_u32 vcc, 224, v0
  s_and_saveexec_b64 s[24:25], vcc
  s_cbranch_execz k5_atom_done
  ds_read_b128 v[16:19], v4
  ds_read_b128 v[20:23], v4 offset:3584
  ds_read_b128 v[24:27], v4 offset:7168
  ds_read_b128 v[28:31], v4 offset:10752
  s_and_b32 s19, s2, {NREP-1}
  s_mul_i32 s19, s19, 3584
  s_add_u32 s19, s19, {WS_ACC}
  v_add_u32 v5, s19, v4
  s_waitcnt lgkmcnt(0)
''')
for k in range(4):
    e(f'  v_add_f32 v{16+k}, v{16+k}, v{20+k}')
    e(f'  v_add_f32 v{24+k}, v{24+k}, v{28+k}')
    e(f'  v_add_f32 v{16+k}, v{16+k}, v{24+k}')
for k in range(4):
    e(f'  global_atomic_add_f32 v5, v{16+k}, s[12:13] offset:{4*k}')
e(f'''  s_waitcnt vmcnt(0)
k5_atom_done:
  s_mov_b64 exec, s[24:25]
  s_barrier
  v_cmp_eq_u32 vcc, 0, v0
  s_and_saveexec_b64 s[24:25], vcc
  v_mov_b32 v6, 0
  v_mov_b32 v7, 1
  s_cbranch_execz k5_cnt_done
  global_atomic_add v7, v6, v7, s[28:29] sc0
  s_waitcnt vmcnt(0)
  v_mov_b32 v6, 0
  ds_write_b32 v6, v7 offset:15360
  s_waitcnt lgkmcnt(0)
k5_cnt_done:
  s_mov_b64 exec, s[24:25]
  s_barrier
  v_mov_b32 v6, 0
  ds_read_b32 v7, v6 offset:15360
  s_waitcnt lgkmcnt(0)
  s_nop 0
  v_readfirstlane_b32 s19, v7
  s_cmp_eq_u32 s19, 183
  s_cbranch_scc0 k5_end
  v_cmp_gt_u32 vcc, 224, v0
  s_and_saveexec_b64 s[24:25], vcc
  s_cbranch_execz k5_end
  v_lshlrev_b32 v4, 4, v0
  v_add_u32 v5, {WS_ACC}, v4
''')
for r in range(NREP):
    e(f'  global_load_dwordx4 v[{16+4*r}:{19+4*r}], v5, s[12:13] sc1')
    e('  v_add_u32 v5, 3584, v5')
e('''  v_lshlrev_b32 v6, 3, v0
  global_load_dwordx2 v[8:9], v6, s[8:9]
  v_cmp_le_u32 vcc, 112, v0
  v_subrev_u32 v7, 896, v6
  v_cndmask_b32 v7, v6, v7, vcc    ; b2 offset
  global_load_dwordx2 v[10:11], v7, s[10:11]
  s_waitcnt vmcnt(0)
''')
for r in range(1, NREP):
    for k in range(4): e(f'  v_add_f32 v{16+k}, v{16+k}, v{16+4*r+k}')
e('''  v_lshlrev_b32 v12, 16, v8
  v_and_b32 v13, 0xffff0000, v8
  v_lshlrev_b32 v14, 16, v9
  v_and_b32 v15, 0xffff0000, v9
  v_add_f32 v16, v16, v12
  v_add_f32 v17, v17, v13
  v_add_f32 v18, v18, v14
  v_add_f32 v19, v19, v15
  v_lshlrev_b32 v12, 16, v10
  v_and_b32 v13, 0xffff0000, v10
  v_lshlrev_b32 v14, 16, v11
  v_and_b32 v15, 0xffff0000, v11
  v_add_f32 v16, v16, v12
  v_add_f32 v17, v17, v13
  v_add_f32 v18, v18, v14
  v_add_f32 v19, v19, v15
  v_cvt_pk_bf16_f32 v16, v16, v17
  v_cvt_pk_bf16_f32 v17, v18, v19
  global_store_dwordx2 v6, v[16:17], s[26:27]
k5_end:
  s_endpgm
''')

e('.section .rodata,"a"')
for k, nv in (('k1', 128), ('k2', 96), ('k3', 128), ('k4', 128), ('k5', 128)):
    e(f'''.p2align 6
.amdhsa_kernel {k}_kernel
  .amdhsa_next_free_vgpr {nv}
  .amdhsa_next_free_sgpr 40
  .amdhsa_accum_offset {nv}
  .amdhsa_group_segment_fixed_size 0
  .amdhsa_kernarg_size 112
  .amdhsa_user_sgpr_count 2
  .amdhsa_user_sgpr_kernarg_segment_ptr 1
  .amdhsa_system_sgpr_workgroup_id_x 1
.end_amdhsa_kernel''')
open('parallel_sum__compressed_kv_cla__dense_activation_gelu__decode.s', 'w').write('\n'.join(o) + '\n')
```

```python
WS_Q, WS_H, WS_ACC, WS_QABS, WS_STAT, WS_CTXP, WS_OP = 0x0, 0x10000, 0x20000, 0x30000, 0x50000, 0x80000, 0x100000
NREP = 8
o = []
def e(s): o.append(s)

hdr = open('parallel_sum__compressed_kv_cla__dense_activation_gelu__decode.s.ref').read().split('; Override')[0]
e(hdr.rstrip())
e('; @launch kernel=k1_kernel grid=(92,1,1) block=(256,1,1) lds=20480')
e('; @launch kernel=k2_kernel grid=(256,1,1) block=(256,1,1) lds=0')
e('; @launch kernel=k3_kernel grid=(256,1,1) block=(256,1,1) lds=75264')
e('; @launch kernel=k4_kernel grid=(256,1,1) block=(256,1,1) lds=18432')
e('; @launch kernel=k5_kernel grid=(184,1,1) block=(256,1,1) lds=16384')
e('.amdgcn_target "amdgcn-amd-amdhsa--gfx950"')
e('.text')
e('''.macro DPPRED op, v, bc
  s_nop 1
  \\op \\v, \\v, \\v row_shr:1 row_mask:0xf bank_mask:0xf \\bc
  s_nop 1
  \\op \\v, \\v, \\v row_shr:2 row_mask:0xf bank_mask:0xf \\bc
  s_nop 1
  \\op \\v, \\v, \\v row_shr:4 row_mask:0xf bank_mask:0xf \\bc
  s_nop 1
  \\op \\v, \\v, \\v row_shr:8 row_mask:0xf bank_mask:0xf \\bc
  s_nop 1
  \\op \\v, \\v, \\v row_bcast:15 row_mask:0xa bank_mask:0xf
  s_nop 1
  \\op \\v, \\v, \\v row_bcast:31 row_mask:0xc bank_mask:0xf
  s_nop 1
.endm''')

def kstart(name):
    e(f'.globl {name}\n.p2align 8\n.type {name},@function\n{name}:')

kstart('k1_kernel')
e('''
  s_cmp_ge_u32 s2, 92
  s_cbranch_scc1 k1_end
  s_load_dwordx2 s[4:5], s[0:1], 0
  s_load_dwordx2 s[6:7], s[0:1], 16
  s_load_dwordx2 s[8:9], s[0:1], 56
  s_load_dwordx2 s[10:11], s[0:1], 64
  s_load_dwordx2 s[12:13], s[0:1], 104
  v_lshrrev_b32 v1, 6, v0
  v_and_b32 v2, 63, v0
  v_readfirstlane_b32 s14, v1
  s_waitcnt lgkmcnt(0)
  s_sub_u32 s20, s2, 64
  s_cmp_lt_u32 s2, 64
  s_cselect_b32 s16, s6, s8
  s_cselect_b32 s17, s7, s9
  s_movk_i32 s18, 3584
  s_cselect_b32 s18, 8192, s18
  s_cselect_b32 s19, s2, s20
  s_lshl_b32 s19, s19, 7
  v_lshrrev_b32 v3, 3, v2
  s_mul_i32 s21, s14, 112
  v_add_u32 v3, s21, v3
  v_mul_lo_u32 v4, v3, s18
  v_and_b32 v5, 7, v2
  v_lshlrev_b32 v5, 4, v5
  v_add3_u32 v4, v4, v5, s19
  s_lshl_b32 s22, s18, 3
''')
for i in range(14):
    e(f'  global_load_dwordx4 v[{16+4*i}:{19+4*i}], v4, s[16:17] nt')
    if i < 13: e('  v_add_u32 v4, s22, v4')
e(f'''
  s_cmp_ge_u32 s2, {NREP}
  s_cbranch_scc1 k1_nozero
  v_cmp_gt_u32 vcc, 224, v0
  s_and_saveexec_b64 s[24:25], vcc
  s_cbranch_execz k1_z2
  v_mov_b32 v8, 0
  v_mov_b32 v9, 0
  v_mov_b32 v10, 0
  v_mov_b32 v11, 0
  s_mul_i32 s23, s2, 3584
  s_add_u32 s23, s23, {WS_ACC}
  v_lshlrev_b32 v6, 4, v0
  v_add_u32 v6, s23, v6
  global_store_dwordx4 v6, v[8:11], s[12:13]
k1_z2:
  s_mov_b64 exec, s[24:25]
k1_nozero:
  s_cmp_ge_u32 s14, 2
  s_cbranch_scc1 k1_noln
  v_mov_b32 v8, 0
  v_mov_b32 v9, 0
  v_mov_b32 v10, 0
  v_mov_b32 v11, 0
  s_mul_i32 s23, s14, 896
  v_lshlrev_b32 v6, 4, v2
  v_add_u32 v6, s23, v6
  v_cmp_gt_u32 vcc, 56, v2
  s_and_saveexec_b64 s[24:25], vcc
  global_load_dwordx4 v[8:11], v6, s[4:5]
  s_mov_b64 exec, s[24:25]
  s_waitcnt vmcnt(0)
''')
for r in range(4):
    e(f'  v_lshlrev_b32 v{80+2*r}, 16, v{8+r}')
    e(f'  v_and_b32 v{81+2*r}, 0xffff0000, v{8+r}')
e('  v_add_f32 v12, v80, v81')
for r in range(2, 8): e(f'  v_add_f32 v12, v12, v{80+r}')
e('''  DPPRED v_add_f32_dpp, v12, bound_ctrl:0
  v_readlane_b32 s26, v12, 63
  s_nop 1
  v_mov_b32 v13, 0x3b124925
  v_mul_f32 v13, s26, v13
  v_mov_b32 v12, 0
''')
for r in range(8):
    e(f'  v_sub_f32 v14, v{80+r}, v13')
    e(f'  v_fmac_f32 v12, v14, v14')
e('''  v_cndmask_b32 v12, 0, v12, vcc
  DPPRED v_add_f32_dpp, v12, bound_ctrl:0
  v_readlane_b32 s27, v12, 63
  s_nop 1
  v_mov_b32 v14, 0x3b124925
  v_mul_f32 v14, s27, v14
  v_cvt_pk_bf16_f32 v13, v13, v14
  v_and_b32 v14, 0xffff0000, v13   ; var
  v_lshlrev_b32 v13, 16, v13       ; mean
  v_add_f32 v14, 0x3727c5ac, v14   ; +1e-5
  v_cvt_pk_bf16_f32 v14, v14, v14
  v_lshlrev_b32 v14, 16, v14
  v_sqrt_f32 v14, v14
  s_nop 0
  v_cvt_pk_bf16_f32 v14, v14, v14
  v_lshlrev_b32 v14, 16, v14       ; den
  v_rcp_f32 v15, v14
  s_nop 0
''')
for r in range(8):
    e(f'  v_sub_f32 v{80+r}, v{80+r}, v13')
    e(f'  v_cvt_pk_bf16_f32 v{80+r}, v{80+r}, v{80+r}')
    e(f'  v_lshlrev_b32 v{80+r}, 16, v{80+r}')
    e(f'  v_mul_f32 v7, v{80+r}, v15')
    e(f'  v_fma_f32 v6, -v7, v14, v{80+r}')
    e(f'  v_fma_f32 v7, v6, v15, v7')
    e(f'  v_cvt_pk_bf16_f32 v7, v7, v7')
    e(f'  v_lshlrev_b32 v{80+r}, 16, v7')
e('''  v_lshlrev_b32 v6, 6, v2
  s_lshl_b32 s23, s14, 2
  v_add_u32 v6, s23, v6            ; (lane*8*2 + b)*4
  s_and_saveexec_b64 s[24:25], vcc
''')
for r in range(8): e(f'  ds_write_b32 v6, v{80+r} offset:{8*r}')
e('''  s_mov_b64 exec, s[24:25]
k1_noln:
  s_waitcnt lgkmcnt(0)
  s_barrier
  v_lshlrev_b32 v6, 3, v3          ; m0*8
''')
for i in range(14): e(f'  ds_read_b64 v[{80+2*i}:{81+2*i}], v6 offset:{64*i}')
for c in range(16): e(f'  v_mov_b32 v{112+c}, 0')
e('  s_waitcnt vmcnt(0) lgkmcnt(0)')
for i in range(14):
    for r in range(4):
        w = 16 + 4*i + r
        e(f'  v_lshlrev_b32 v8, 16, v{w}')
        e(f'  v_and_b32 v9, 0xffff0000, v{w}')
        e(f'  v_fmac_f32 v{112+2*r}, v{80+2*i}, v8')
        e(f'  v_fmac_f32 v{113+2*r}, v{80+2*i}, v9')
        e(f'  v_fmac_f32 v{120+2*r}, v{81+2*i}, v8')
        e(f'  v_fmac_f32 v{121+2*r}, v{81+2*i}, v9')
e('''  v_lshrrev_b32 v6, 3, v0          ; w*8+rsub
  v_lshlrev_b32 v6, 9, v6
  v_and_b32 v7, 7, v0
  v_lshlrev_b32 v7, 5, v7
  v_add_u32 v6, v6, v7
  ds_write_b128 v6, v[112:115] offset:4096
  ds_write_b128 v6, v[116:119] offset:4112
  ds_write_b128 v6, v[120:123] offset:4352
  ds_write_b128 v6, v[124:127] offset:4368
  s_waitcnt lgkmcnt(0)
  s_barrier
  v_cmp_gt_u32 vcc, 128, v0
  s_and_saveexec_b64 s[24:25], vcc
  s_cbranch_execz k1_end
  v_lshrrev_b32 v6, 6, v0          ; b
  v_and_b32 v7, 63, v0             ; col
  v_lshlrev_b32 v8, 8, v6
  v_lshl_add_u32 v8, v7, 2, v8
''')
for i in range(32): e(f'  ds_read_b32 v{16+i}, v8 offset:{4096+512*i}')
e('  s_waitcnt lgkmcnt(0)')
for i in range(1, 32): e(f'  v_add_f32 v16, v16, v{16+i}')
e(f'''  v_cvt_pk_bf16_f32 v16, v16, v16
  s_cmp_lt_u32 s2, 64
  s_cbranch_scc0 k1_mlp
  s_lshl_b32 s23, s2, 7
  v_lshlrev_b32 v8, 13, v6
  v_lshl_add_u32 v8, v7, 1, v8
  v_add_u32 v8, s23, v8
  global_store_short v8, v16, s[12:13]
  s_branch k1_end
k1_mlp:
  s_lshl_b32 s23, s20, 7           ; f0*2
  v_lshl_add_u32 v8, v7, 1, s23
  global_load_ushort v17, v8, s[10:11]
  v_lshlrev_b32 v16, 16, v16
  s_waitcnt vmcnt(0)
  v_lshlrev_b32 v17, 16, v17
  v_add_f32 v16, v16, v17
  v_cvt_pk_bf16_f32 v16, v16, v16
  v_lshlrev_b32 v16, 16, v16
  v_mul_f32 v17, v16, v16
  v_mov_b32 v18, 0x3d372713
  v_fma_f32 v17, v17, v18, 1.0     ; 1+0.044715x^2
  v_mul_f32 v17, v17, v16
  v_mul_f32 v17, 0x40135761, v17   ; 2*sqrt(2/pi)*log2e
  v_exp_f32 v17, v17
  s_nop 0
  v_add_f32 v17, 1.0, v17
  v_rcp_f32 v17, v17
  s_nop 0
  v_fma_f32 v16, -v16, v17, v16    ; x - x/(1+e)
  v_cvt_pk_bf16_f32 v16, v16, v16
  v_lshlrev_b32 v16, 16, v16
  s_lshl_b32 s23, s20, 8           ; f0*4
  s_add_u32 s23, s23, {WS_H}
  v_mul_u32_u24 v8, 7168, v6
  v_lshl_add_u32 v8, v7, 2, v8
  v_add_u32 v8, s23, v8
  global_store_dword v8, v16, s[12:13]
k1_end:
  s_endpgm
''')

kstart('k2_kernel')
e(f'''
  s_cmp_ge_u32 s2, 256
  s_cbranch_scc1 k2_end
  s_load_dwordx2 s[4:5], s[0:1], 24
  s_load_dwordx2 s[12:13], s[0:1], 104
  s_lshr_b32 s14, s2, 4            ; h
  s_and_b32 s15, s2, 15            ; j
  v_lshrrev_b32 v1, 6, v0          ; wave
  v_and_b32 v2, 15, v0             ; l&15
  v_bfe_u32 v3, v0, 4, 2           ; (l>>4)&3
  s_lshl_b32 s16, s15, 6           ; 64j
  v_lshl_add_u32 v4, v1, 4, v2     ; 16w + (l&15)
  v_add_u32 v4, s16, v4            ; c
  v_lshlrev_b32 v5, 13, v4
  s_lshl_b32 s17, s14, 9           ; h*512
  v_lshl_add_u32 v5, v3, 4, v5
  v_add_u32 v5, s17, v5
  v_and_b32 v6, 1, v0
  v_lshlrev_b32 v6, 13, v6         ; (l&1)*8192
  v_lshl_add_u32 v6, v3, 4, v6
  v_add_u32 v6, s17, v6
  s_waitcnt lgkmcnt(0)
''')
for s in range(8):
    e(f'  global_load_dwordx4 v[{16+4*s}:{19+4*s}], v5, s[4:5] offset:{64*s} nt')
    e(f'  global_load_dwordx4 v[{48+4*s}:{51+4*s}], v6, s[12:13] offset:{64*s}')
for s in range(8):
    e(f'  s_waitcnt vmcnt({14-2*s})')
    src = '0' if s == 0 else 'v[80:83]'
    e(f'  v_mfma_f32_16x16x32_bf16 v[80:83], v[{16+4*s}:{19+4*s}], v[{48+4*s}:{51+4*s}], {src}')
e(f'''  s_nop 7
  s_nop 3
  v_mov_b32 v7, 0x3db8aa3b          ; log2e/16
  v_mul_f32 v80, v80, v7
  v_mul_f32 v81, v81, v7
  v_mul_f32 v82, v82, v7
  v_mul_f32 v83, v83, v7
  v_cvt_pk_bf16_f32 v80, v80, v81
  v_cvt_pk_bf16_f32 v81, v82, v83
  v_lshlrev_b32 v8, 15, v2
  v_lshl_add_u32 v8, v1, 5, v8
  v_lshl_add_u32 v8, v3, 3, v8
  s_lshl_b32 s18, s14, 11
  s_lshl_b32 s19, s15, 7
  s_add_u32 s18, s18, s19
  s_add_u32 s18, s18, {WS_QABS}
  v_add_u32 v8, s18, v8
  v_cmp_gt_u32 vcc, 2, v2
  s_and_saveexec_b64 s[24:25], vcc
  global_store_dwordx2 v8, v[80:81], s[12:13]
k2_end:
  s_endpgm
''')

RS = 2064
SBASE = 0
CBASE = 9216
SH = 144
SW = 16 * SH
kstart('k3_kernel')
e(f'''
  s_cmp_ge_u32 s2, 256
  s_cbranch_scc1 k3_end
  s_load_dwordx2 s[4:5], s[0:1], 8
  s_load_dwordx2 s[12:13], s[0:1], 104
  s_lshr_b32 s14, s2, 7            ; b
  s_and_b32 s15, s2, 127           ; chunk
  v_lshrrev_b32 v1, 6, v0          ; wave
  v_and_b32 v2, 15, v0             ; l&15
  v_bfe_u32 v3, v0, 4, 2           ; g
  s_lshl_b32 s16, s14, 23
  s_lshl_b32 s17, s15, 16
  s_add_u32 s16, s16, s17
  v_lshlrev_b32 v4, 11, v2
  v_lshl_add_u32 v4, v1, 9, v4
  v_lshl_add_u32 v4, v3, 4, v4     ; key*2048 + w*512 + g*16
  v_add_u32 v5, s16, v4
  s_lshl_b32 s17, s14, 15
  s_add_u32 s17, s17, {WS_QABS}
  v_add_u32 v6, s17, v4
  s_waitcnt lgkmcnt(0)
''')
for s in range(8):
    e(f'  global_load_dwordx4 v[{16+4*s}:{19+4*s}], v5, s[4:5] offset:{64*s} nt')
    e(f'  global_load_dwordx4 v[{80+4*s}:{83+4*s}], v6, s[12:13] offset:{64*s}')
e('  v_add_u32 v5, 0x8000, v5')
for s in range(8):
    e(f'  global_load_dwordx4 v[{48+4*s}:{51+4*s}], v5, s[4:5] offset:{64*s} nt')
e(f'''  v_mul_u32_u24 v7, {RS}, v2
  v_lshl_add_u32 v7, v1, 9, v7
  v_lshl_add_u32 v7, v3, 4, v7
  v_add_u32 v7, {CBASE}, v7
''')
for s in range(8):
    e(f'  s_waitcnt vmcnt({22-2*s})')
    src = '0' if s == 0 else 'v[112:115]'
    e(f'  v_mfma_f32_16x16x32_bf16 v[112:115], v[{16+4*s}:{19+4*s}], v[{80+4*s}:{83+4*s}], {src}')
    e(f'  ds_write_b128 v7, v[{16+4*s}:{19+4*s}] offset:{64*s}')
for s in range(8):
    e(f'  s_waitcnt vmcnt({7-s})')
    src = '0' if s == 0 else 'v[116:119]'
    e(f'  v_mfma_f32_16x16x32_bf16 v[116:119], v[{48+4*s}:{51+4*s}], v[{80+4*s}:{83+4*s}], {src}')
    e(f'  ds_write_b128 v7, v[{48+4*s}:{51+4*s}] offset:{16*RS+64*s}')
e(f'''  v_mul_u32_u24 v8, {SH}, v2
  v_mul_u32_u24 v9, {SW}, v1
  v_add_u32 v8, v8, v9
  v_lshl_add_u32 v8, v3, 4, v8
  s_nop 7
  ds_write_b128 v8, v[112:115] offset:{SBASE}
  ds_write_b128 v8, v[116:119] offset:{SBASE+64}
  s_waitcnt lgkmcnt(0)
  s_barrier
  v_mul_u32_u24 v8, {SH}, v2
  v_lshl_add_u32 v8, v3, 5, v8     ; h*SH + g*32
''')
for w in range(4):
    e(f'  ds_read_b128 v[{16+8*w}:{19+8*w}], v8 offset:{SBASE+w*SW}')
    e(f'  ds_read_b128 v[{20+8*w}:{23+8*w}], v8 offset:{SBASE+w*SW+16}')
e(f'''  v_xor_b32 v10, 16, v0
  v_and_b32 v10, 63, v10
  v_lshlrev_b32 v10, 2, v10
  v_xor_b32 v11, 32, v0
  v_and_b32 v11, 63, v11
  v_lshlrev_b32 v11, 2, v11
  s_waitcnt lgkmcnt(0)
''')
for k in range(8):
    e(f'  v_add_f32 v{16+k}, v{16+k}, v{24+k}')
    e(f'  v_add_f32 v{32+k}, v{32+k}, v{40+k}')
    e(f'  v_add_f32 v{16+k}, v{16+k}, v{32+k}')
e('''  v_max_f32 v12, v16, v17
  v_max3_f32 v12, v12, v18, v19
  v_max3_f32 v12, v12, v20, v21
  v_max3_f32 v12, v12, v22, v23
  ds_bpermute_b32 v13, v10, v12
  s_waitcnt lgkmcnt(0)
  v_max_f32 v12, v12, v13
  ds_bpermute_b32 v13, v11, v12
  s_waitcnt lgkmcnt(0)
  v_max_f32 v12, v12, v13          ; m
''')
for k in range(8):
    e(f'  v_sub_f32 v{16+k}, v{16+k}, v12')
    e(f'  v_exp_f32 v{16+k}, v{16+k}')
e('  s_nop 0')
e('  v_add_f32 v13, v16, v17')
for k in range(2, 8): e(f'  v_add_f32 v13, v13, v{16+k}')
e('''  ds_bpermute_b32 v14, v10, v13
  v_cvt_pk_bf16_f32 v24, v16, v17
  v_cvt_pk_bf16_f32 v25, v18, v19
  v_cvt_pk_bf16_f32 v26, v20, v21
  v_cvt_pk_bf16_f32 v27, v22, v23
  s_waitcnt lgkmcnt(0)
  v_add_f32 v13, v13, v14
  ds_bpermute_b32 v14, v11, v13
  s_waitcnt lgkmcnt(0)
  v_add_f32 v13, v13, v14          ; l
''')
e(f'''  v_bfe_u32 v14, v0, 2, 2          ; r
  v_lshl_add_u32 v14, v3, 3, v14   ; 8g + r
  v_mul_u32_u24 v14, {RS}, v14
  v_and_b32 v15, 3, v0             ; q
  v_lshl_add_u32 v14, v15, 5, v14  ; + 16q*2
  v_lshl_add_u32 v14, v1, 9, v14   ; + 256w*2
  v_add_u32 v14, {CBASE}, v14
''')
for tg in range(4):
    for t in range(4):
        base = 32 + 4 * t
        off = tg * 128 + t * 8
        e(f'  ds_read_b64_tr_b16 v[{base}:{base+1}], v14 offset:{off}')
        e(f'  ds_read_b64_tr_b16 v[{base+2}:{base+3}], v14 offset:{off+4*RS}')
    for t in range(4):
        e(f'  s_waitcnt lgkmcnt({6-2*t})')
        e(f'  v_mfma_f32_16x16x32_bf16 v[{48+4*t}:{51+4*t}], v[{32+4*t}:{35+4*t}], v[24:27], 0')
    e('  s_nop 7')
    e('  s_nop 3')
    for t in range(4):
        e(f'  v_cvt_pk_bf16_f32 v{64+2*t}, v{48+4*t}, v{49+4*t}')
        e(f'  v_cvt_pk_bf16_f32 v{65+2*t}, v{50+4*t}, v{51+4*t}')
    if tg == 0:
        e(f'''  s_lshl_b32 s18, s2, 15
  s_add_u32 s18, s18, {WS_OP}
  v_lshlrev_b32 v9, 11, v2
  v_lshl_add_u32 v9, v1, 9, v9
  v_lshl_add_u32 v9, v3, 5, v9
  v_add_u32 v9, s18, v9''')
    e(f'  global_store_dwordx4 v9, v[64:67], s[12:13] offset:{tg*128}')
    e(f'  global_store_dwordx4 v9, v[68:71], s[12:13] offset:{tg*128+16}')
    e('  s_nop 1')
e(f'''  v_cmp_gt_u32 vcc, 16, v0
  s_and_saveexec_b64 s[24:25], vcc
  s_cbranch_execz k3_end
  s_lshl_b32 s18, s2, 7
  s_add_u32 s18, s18, {WS_STAT}
  v_lshl_add_u32 v9, v0, 3, s18
  global_store_dwordx2 v9, v[12:13], s[12:13]
k3_end:
  s_endpgm
''')

kstart('k4_kernel')
e(f'''
  s_cmp_ge_u32 s2, 256
  s_cbranch_scc1 k4_end
  s_load_dwordx2 s[4:5], s[0:1], 32
  s_load_dwordx2 s[12:13], s[0:1], 104
  s_lshr_b32 s14, s2, 4            ; h
  s_and_b32 s15, s2, 15            ; j
  v_lshrrev_b32 v1, 6, v0          ; wave
  v_and_b32 v2, 63, v0             ; lane
  s_lshl_b32 s16, s14, 3
  s_add_u32 s16, s16, {WS_STAT}
  v_lshlrev_b32 v3, 7, v0
  v_add_u32 v3, s16, v3
  v_lshrrev_b32 v4, 3, v0
  v_lshrrev_b32 v5, 3, v2
  v_lshl_add_u32 v5, v1, 6, v5     ; row0
  v_lshlrev_b32 v5, 15, v5
  v_and_b32 v6, 7, v0
  v_lshl_add_u32 v5, v6, 4, v5
  s_lshl_b32 s17, s14, 11
  s_lshl_b32 s18, s15, 7
  s_add_u32 s17, s17, s18
  s_add_u32 s17, s17, {WS_OP}
  v_add_u32 v5, s17, v5
  v_lshrrev_b32 v6, 5, v2
  v_lshl_add_u32 v6, v1, 4, v6
  s_lshl_b32 s18, s15, 6
  v_add_u32 v6, s18, v6
  v_lshlrev_b32 v6, 13, v6
  v_and_b32 v7, 31, v0
  v_lshl_add_u32 v6, v7, 4, v6
  s_lshl_b32 s18, s14, 9
  v_add_u32 v6, s18, v6
  s_waitcnt lgkmcnt(0)
  global_load_dwordx2 v[8:9], v3, s[12:13]
''')
for i in range(8):
    e(f'  global_load_dwordx4 v[{16+4*i}:{19+4*i}], v5, s[12:13]')
    e('  v_add_u32 v5, 0x40000, v5')
for i in range(8):
    e(f'  global_load_dwordx4 v[{48+4*i}:{51+4*i}], v6, s[4:5] nt')
    e('  v_add_u32 v6, 0x4000, v6')
e('''  s_waitcnt vmcnt(16)
  v_mov_b32 v10, v8
  DPPRED v_max_f32_dpp, v10,
  v_readlane_b32 s20, v10, 63
  v_lshlrev_b32 v11, 2, v1
  v_mov_b32 v12, s20
  ds_write_b32 v11, v12            ; lds[w*4]
  s_waitcnt lgkmcnt(0)
  s_barrier
  v_and_b32 v11, 2, v1
  v_lshlrev_b32 v11, 2, v11        ; (b*2)*4
  ds_read_b64 v[12:13], v11
  s_waitcnt lgkmcnt(0)
  v_max_f32 v12, v12, v13          ; M_b
  v_sub_f32 v10, v8, v12
  v_exp_f32 v10, v10               ; w_s
  s_nop 0
  v_mul_f32 v13, v10, v9           ; w*l
  DPPRED v_add_f32_dpp, v13, bound_ctrl:0
  v_readlane_b32 s20, v13, 63
  v_lshlrev_b32 v11, 2, v1
  v_mov_b32 v13, s20
  ds_write_b32 v11, v13 offset:16
  s_waitcnt lgkmcnt(0)
  s_barrier
  v_and_b32 v11, 2, v1
  v_lshlrev_b32 v11, 2, v11
  ds_read_b64 v[12:13], v11 offset:16
  s_waitcnt lgkmcnt(0)
  v_add_f32 v12, v12, v13          ; L_b
  v_rcp_f32 v12, v12
  s_nop 0
  v_mul_f32 v10, v10, v12          ; f = w/L
  v_lshlrev_b32 v11, 2, v0
  ds_write_b32 v11, v10 offset:64  ; f[t]
  s_waitcnt lgkmcnt(0)
  s_barrier
  v_lshrrev_b32 v11, 3, v2
  v_lshl_add_u32 v11, v1, 6, v11
  v_lshlrev_b32 v11, 2, v11
''')
for i in range(8): e(f'  ds_read_b32 v{80+i}, v11 offset:{64+32*i}')
for c in range(8): e(f'  v_mov_b32 v{88+c}, 0')
e('  s_waitcnt vmcnt(8) lgkmcnt(0)')
for i in range(8):
    for r in range(4):
        w = 16 + 4*i + r
        e(f'  v_lshlrev_b32 v12, 16, v{w}')
        e(f'  v_and_b32 v13, 0xffff0000, v{w}')
        e(f'  v_fmac_f32 v{88+2*r}, v{80+i}, v12')
        e(f'  v_fmac_f32 v{89+2*r}, v{80+i}, v13')
e('''  v_lshrrev_b32 v11, 3, v0
  v_lshlrev_b32 v11, 8, v11
  v_and_b32 v12, 7, v0
  v_lshl_add_u32 v11, v12, 5, v11
  ds_write_b128 v11, v[88:91] offset:2048
  ds_write_b128 v11, v[92:95] offset:2064
  s_waitcnt lgkmcnt(0)
  s_barrier
  v_lshrrev_b32 v11, 6, v0         ; b for t<128
  v_lshlrev_b32 v11, 12, v11       ; b*16*256
  v_lshl_add_u32 v11, v2, 2, v11
''')
for i in range(16): e(f'  ds_read_b32 v{16+i}, v11 offset:{2048+256*i}')
e('  s_waitcnt lgkmcnt(0)')
for i in range(1, 16): e(f'  v_add_f32 v16, v16, v{16+i}')
e('''  v_lshlrev_b32 v11, 2, v0
  v_cmp_gt_u32 vcc, 128, v0
  s_and_saveexec_b64 s[24:25], vcc
  ds_write_b32 v11, v16 offset:1280 ; lat[b][64]
  s_mov_b64 exec, s[24:25]
  s_waitcnt lgkmcnt(0)
  s_barrier
  v_lshrrev_b32 v11, 5, v2
  v_lshl_add_u32 v11, v1, 4, v11
  v_lshlrev_b32 v11, 2, v11
''')
for i in range(8):
    e(f'  ds_read_b32 v{80+i}, v11 offset:{1280+8*i}')
    e(f'  ds_read_b32 v{96+i}, v11 offset:{1280+256+8*i}')
for c in range(16): e(f'  v_mov_b32 v{112+c}, 0')
e('  s_waitcnt vmcnt(0) lgkmcnt(0)')
for i in range(8):
    for r in range(4):
        w = 48 + 4*i + r
        e(f'  v_lshlrev_b32 v12, 16, v{w}')
        e(f'  v_and_b32 v13, 0xffff0000, v{w}')
        e(f'  v_fmac_f32 v{112+2*r}, v{80+i}, v12')
        e(f'  v_fmac_f32 v{113+2*r}, v{80+i}, v13')
        e(f'  v_fmac_f32 v{120+2*r}, v{96+i}, v12')
        e(f'  v_fmac_f32 v{121+2*r}, v{96+i}, v13')
e('''  v_lshrrev_b32 v11, 5, v0
  v_lshlrev_b32 v11, 11, v11
  v_and_b32 v12, 31, v0
  v_lshl_add_u32 v11, v12, 5, v11
  ds_write_b128 v11, v[112:115] offset:2048
  ds_write_b128 v11, v[116:119] offset:2064
  ds_write_b128 v11, v[120:123] offset:3072
  ds_write_b128 v11, v[124:127] offset:3088
  s_waitcnt lgkmcnt(0)
  s_barrier
  v_lshlrev_b32 v11, 3, v0
''')
for i in range(8): e(f'  ds_read_b64 v[{16+2*i}:{17+2*i}], v11 offset:{2048+2048*i}')
e('  s_waitcnt lgkmcnt(0)')
for i in range(1, 8):
    e(f'  v_add_f32 v16, v16, v{16+2*i}')
    e(f'  v_add_f32 v17, v17, v{17+2*i}')
e(f'''  ; addr = WS_CTXP + ((j*2+b)*4096 + h*256 + d)*4
  v_lshrrev_b32 v11, 7, v0
  v_lshlrev_b32 v11, 14, v11
  v_and_b32 v12, 127, v0
  v_lshl_add_u32 v11, v12, 3, v11
  s_lshl_b32 s18, s15, 15
  s_lshl_b32 s19, s14, 10
  s_add_u32 s18, s18, s19
  s_add_u32 s18, s18, {WS_CTXP}
  v_add_u32 v11, s18, v11
  global_store_dwordx2 v11, v[16:17], s[12:13]
k4_end:
  s_endpgm
''')

kstart('k5_kernel')
e(f'''
  s_cmp_ge_u32 s2, 184
  s_cbranch_scc1 k5_end
  s_load_dwordx2 s[4:5], s[0:1], 40
  s_load_dwordx2 s[6:7], s[0:1], 72
  s_load_dwordx2 s[12:13], s[0:1], 104
  s_load_dwordx2 s[8:9], s[0:1], 0
  s_load_dwordx2 s[10:11], s[0:1], 80
  s_load_dwordx2 s[26:27], s[0:1], 88
  s_load_dwordx2 s[28:29], s[0:1], 96
  v_lshrrev_b32 v1, 6, v0
  v_and_b32 v2, 63, v0
  s_sub_u32 s20, s2, 128
  s_waitcnt lgkmcnt(0)
  s_cmp_lt_u32 s2, 128
  s_cselect_b32 s16, s4, s6
  s_cselect_b32 s17, s5, s7
  s_cselect_b32 s18, s2, s20
  s_mul_i32 s18, s18, 28672        ; 32 rows*896
  v_mul_u32_u24 v3, 7168, v1
  v_lshl_add_u32 v3, v2, 4, v3
  v_add_u32 v3, s18, v3
  v_cmp_gt_u32 vcc, 56, v2
  s_and_saveexec_b64 s[24:25], vcc
''')
for i in range(8):
    e(f'  global_load_dwordx4 v[{16+4*i}:{19+4*i}], v3, s[16:17] offset:{896*(i%4)} nt')
    if i == 3: e('  v_add_u32 v3, 3584, v3')
e('''  s_mov_b64 exec, s[24:25]
  s_cmp_lt_u32 s2, 128
  s_cbranch_scc0 k5_mlpvec
  ; ctx: pair = lane (b = lane>>5, r = lane&31), wave sums j = 4w..4w+3
  v_lshrrev_b32 v4, 5, v2
  v_lshlrev_b32 v4, 14, v4
  v_and_b32 v5, 31, v2
  v_lshl_add_u32 v4, v5, 2, v4
  v_lshl_add_u32 v4, v1, 17, v4
  s_lshl_b32 s19, s2, 7
''' + f'''  s_add_u32 s19, s19, {WS_CTXP}
  v_add_u32 v4, s19, v4
  global_load_dword v8, v4, s[12:13]
  v_add_u32 v4, 0x8000, v4
  global_load_dword v9, v4, s[12:13]
  v_add_u32 v4, 0x8000, v4
  global_load_dword v10, v4, s[12:13]
  v_add_u32 v4, 0x8000, v4
  global_load_dword v11, v4, s[12:13]
  s_waitcnt vmcnt(0)
  v_add_f32 v8, v8, v9
  v_add_f32 v10, v10, v11
  v_add_f32 v8, v8, v10
  v_lshlrev_b32 v5, 2, v0
  ds_write_b32 v5, v8
  s_waitcnt lgkmcnt(0)
  s_barrier
  v_lshlrev_b32 v5, 2, v2
  ds_read_b32 v8, v5
  ds_read_b32 v9, v5 offset:256
  ds_read_b32 v10, v5 offset:512
  ds_read_b32 v11, v5 offset:768
  s_waitcnt lgkmcnt(0)
  v_add_f32 v8, v8, v9
  v_add_f32 v10, v10, v11
  v_add_f32 v8, v8, v10
  v_cvt_pk_bf16_f32 v8, v8, v8
  v_lshlrev_b32 v8, 16, v8
  s_branch k5_vec
k5_mlpvec:
  v_lshrrev_b32 v4, 5, v2
  v_mul_u32_u24 v4, 7168, v4
  v_and_b32 v5, 31, v2
  v_lshl_add_u32 v4, v5, 2, v4
  s_lshl_b32 s19, s20, 7
  s_add_u32 s19, s19, {WS_H}
  v_add_u32 v4, s19, v4
  global_load_dword v8, v4, s[12:13]
  s_waitcnt vmcnt(0)
k5_vec:
  ; v8 = vec[b = lane>>5][r = lane&31] in every wave; broadcast via readlane
''')
for c in range(16): e(f'  v_mov_b32 v{112+c}, 0')
e('  s_waitcnt vmcnt(0)')
e('  v_readfirstlane_b32 s21, v1')
e('  s_lshl_b32 s21, s21, 3')
for i in range(8):
    e(f'  s_add_u32 s22, s21, {i}')
    e(f'  s_add_u32 s23, s21, {32+i}')
    e(f'  v_readlane_b32 s30, v8, s22')
    e(f'  v_readlane_b32 s31, v8, s23')
    e('  s_nop 1')
    for r in range(4):
        w = 16 + 4*i + r
        e(f'  v_lshlrev_b32 v12, 16, v{w}')
        e(f'  v_and_b32 v13, 0xffff0000, v{w}')
        e(f'  v_fmac_f32 v{112+2*r}, s30, v12')
        e(f'  v_fmac_f32 v{113+2*r}, s30, v13')
        e(f'  v_fmac_f32 v{120+2*r}, s31, v12')
        e(f'  v_fmac_f32 v{121+2*r}, s31, v13')
e(f'''  s_barrier
  v_mul_u32_u24 v4, 3584, v1
  v_lshl_add_u32 v4, v2, 5, v4
  s_and_saveexec_b64 s[24:25], vcc
  ds_write_b128 v4, v[112:115]
  ds_write_b128 v4, v[116:119] offset:16
  ds_write_b128 v4, v[120:123] offset:1792
  ds_write_b128 v4, v[124:127] offset:1808
  s_mov_b64 exec, s[24:25]
  s_waitcnt lgkmcnt(0)
  s_barrier
  v_lshlrev_b32 v4, 4, v0
  v_cmp_gt_u32 vcc, 224, v0
  s_and_saveexec_b64 s[24:25], vcc
  s_cbranch_execz k5_atom_done
  ds_read_b128 v[16:19], v4
  ds_read_b128 v[20:23], v4 offset:3584
  ds_read_b128 v[24:27], v4 offset:7168
  ds_read_b128 v[28:31], v4 offset:10752
  s_and_b32 s19, s2, {NREP-1}
  s_mul_i32 s19, s19, 3584
  s_add_u32 s19, s19, {WS_ACC}
  v_add_u32 v5, s19, v4
  s_waitcnt lgkmcnt(0)
''')
for k in range(4):
    e(f'  v_add_f32 v{16+k}, v{16+k}, v{20+k}')
    e(f'  v_add_f32 v{24+k}, v{24+k}, v{28+k}')
    e(f'  v_add_f32 v{16+k}, v{16+k}, v{24+k}')
for k in range(4):
    e(f'  global_atomic_add_f32 v5, v{16+k}, s[12:13] offset:{4*k}')
e(f'''  s_waitcnt vmcnt(0)
k5_atom_done:
  s_mov_b64 exec, s[24:25]
  s_barrier
  v_cmp_eq_u32 vcc, 0, v0
  s_and_saveexec_b64 s[24:25], vcc
  v_mov_b32 v6, 0
  v_mov_b32 v7, 1
  s_cbranch_execz k5_cnt_done
  global_atomic_add v7, v6, v7, s[28:29] sc0
  s_waitcnt vmcnt(0)
  v_mov_b32 v6, 0
  ds_write_b32 v6, v7 offset:15360
  s_waitcnt lgkmcnt(0)
k5_cnt_done:
  s_mov_b64 exec, s[24:25]
  s_barrier
  v_mov_b32 v6, 0
  ds_read_b32 v7, v6 offset:15360
  s_waitcnt lgkmcnt(0)
  s_nop 0
  v_readfirstlane_b32 s19, v7
  s_cmp_eq_u32 s19, 183
  s_cbranch_scc0 k5_end
  v_cmp_gt_u32 vcc, 224, v0
  s_and_saveexec_b64 s[24:25], vcc
  s_cbranch_execz k5_end
  v_lshlrev_b32 v4, 4, v0
  v_add_u32 v5, {WS_ACC}, v4
''')
for r in range(NREP):
    e(f'  global_load_dwordx4 v[{16+4*r}:{19+4*r}], v5, s[12:13] sc1')
    e('  v_add_u32 v5, 3584, v5')
e('''  v_lshlrev_b32 v6, 3, v0
  global_load_dwordx2 v[8:9], v6, s[8:9]
  v_cmp_le_u32 vcc, 112, v0
  v_subrev_u32 v7, 896, v6
  v_cndmask_b32 v7, v6, v7, vcc    ; b2 offset
  global_load_dwordx2 v[10:11], v7, s[10:11]
  s_waitcnt vmcnt(0)
''')
for r in range(1, NREP):
    for k in range(4): e(f'  v_add_f32 v{16+k}, v{16+k}, v{16+4*r+k}')
e('''  v_lshlrev_b32 v12, 16, v8
  v_and_b32 v13, 0xffff0000, v8
  v_lshlrev_b32 v14, 16, v9
  v_and_b32 v15, 0xffff0000, v9
  v_add_f32 v16, v16, v12
  v_add_f32 v17, v17, v13
  v_add_f32 v18, v18, v14
  v_add_f32 v19, v19, v15
  v_lshlrev_b32 v12, 16, v10
  v_and_b32 v13, 0xffff0000, v10
  v_lshlrev_b32 v14, 16, v11
  v_and_b32 v15, 0xffff0000, v11
  v_add_f32 v16, v16, v12
  v_add_f32 v17, v17, v13
  v_add_f32 v18, v18, v14
  v_add_f32 v19, v19, v15
  v_cvt_pk_bf16_f32 v16, v16, v17
  v_cvt_pk_bf16_f32 v17, v18, v19
  global_store_dwordx2 v6, v[16:17], s[26:27]
k5_end:
  s_endpgm
''')

e('.section .rodata,"a"')
for k, nv in (('k1', 128), ('k2', 96), ('k3', 128), ('k4', 128), ('k5', 128)):
    e(f'''.p2align 6
.amdhsa_kernel {k}_kernel
  .amdhsa_next_free_vgpr {nv}
  .amdhsa_next_free_sgpr 40
  .amdhsa_accum_offset {nv}
  .amdhsa_group_segment_fixed_size 0
  .amdhsa_kernarg_size 112
  .amdhsa_user_sgpr_count 2
  .amdhsa_user_sgpr_kernarg_segment_ptr 1
  .amdhsa_system_sgpr_workgroup_id_x 1
.end_amdhsa_kernel''')
open('parallel_sum__compressed_kv_cla__dense_activation_gelu__decode.s', 'w').write('\n'.join(o) + '\n')
```
